```python
import torch

def _softmax(x, axis=-1):
    return torch.softmax(x, dim=axis)
def _gelu(x):
    return torch.nn.functional.gelu(x, approximate="tanh")
def _silu(x):
    return torch.nn.functional.silu(x)
def _sigmoid(x):
    return torch.sigmoid(x)
def _layernorm(x, axis=-1, eps=1e-5):
    m = x.mean(dim=axis, keepdim=True)
    v = x.var(dim=axis, keepdim=True, unbiased=False)
    return (x - m) / torch.sqrt(v + eps)
def _scatter_add(tgt, idx, src, axis=0):
    return tgt.clone().index_add_(axis, idx, src)
def _segment_sum(src, seg, n):
    out = torch.zeros((n,) + src.shape[1:], dtype=src.dtype)
    return out.index_add_(0, seg, src)
def _pad(x, pw):
    flat = tuple(v for pair in reversed(pw) for v in pair)
    return torch.nn.functional.pad(x, flat)

kernel_name = 'parallel_sum__ssm_conv_s4d__mixer_token_mlp__prompt'

def setup_inputs():

    _w = (lambda a: (lambda t: t.to(torch.bfloat16) if t.is_floating_point() else t)(torch.as_tensor(a)))
    def _A_setup():
        Bsz, L, D, N = 1, 2048, 512, 128
        return {
            "u": _w((lambda *s: torch.randn(*s, dtype=torch.bfloat16) * 0.05)(Bsz, L, D)),
            "log_A_real": _w((lambda *s: torch.randn(*s, dtype=torch.bfloat16) * 3.2)(D, N) * 0.5),
            "A_imag": _w((lambda *s: torch.randn(*s, dtype=torch.bfloat16) * 0.05)(D, N) * 3.14),
            "C_real": _w((lambda *s: torch.randn(*s, dtype=torch.bfloat16) * 0.2)(D, N) / N ** 0.5),
            "C_imag": _w((lambda *s: torch.randn(*s, dtype=torch.bfloat16) * 0.4)(D, N) / N ** 0.5),
            "log_dt": _w((lambda *s: torch.randn(*s, dtype=torch.bfloat16) * 0.05)(D) * 0.5 - 4.0),
            "D_skip": _w((lambda *s: torch.randn(*s, dtype=torch.bfloat16) * 0.05)(D)),
        }
    _A_in = _A_setup()

    def _B_setup():
        B, S, D, F = 1, 2048, 512, 1792
        return {
            "x": _w((lambda *s: torch.randn(*s, dtype=torch.bfloat16) * 0.05)(B, S, D)),
            "w1": _w((lambda *s: torch.randn(*s, dtype=torch.bfloat16) * 0.8)(S, F) * (S ** -0.5)),
            "b1": _w((lambda *s: torch.randn(*s, dtype=torch.bfloat16) * 3.2)(F) * 0.02),
            "w2": _w((lambda *s: torch.randn(*s, dtype=torch.bfloat16) * 0.8)(F, S) * (F ** -0.5)),
            "b2": _w((lambda *s: torch.randn(*s, dtype=torch.bfloat16) * 3.2)(S) * 0.02),
        }
    _B_in = _B_setup()

    return {
        "A_u": _A_in["u"],
        "A_log_A_real": _A_in["log_A_real"],
        "A_A_imag": _A_in["A_imag"],
        "A_C_real": _A_in["C_real"],
        "A_C_imag": _A_in["C_imag"],
        "A_log_dt": _A_in["log_dt"],
        "A_D_skip": _A_in["D_skip"],
        "B_x": _B_in["x"],
        "B_w1": _B_in["w1"],
        "B_b1": _B_in["b1"],
        "B_w2": _B_in["w2"],
        "B_b2": _B_in["b2"],
    }

def reference(A_u, A_log_A_real, A_A_imag, A_C_real, A_C_imag, A_log_dt, A_D_skip, B_x, B_w1, B_b1, B_w2, B_b2):
    def _A_ref(u, log_A_real, A_imag, C_real, C_imag, log_dt, D_skip):
        L = u.shape[1]
        dt = torch.exp(log_dt)
        A = -torch.exp(log_A_real) + 1j * A_imag
        C = (C_real + 1j * C_imag) * dt[:, None]
        pos = (lambda x, dt: x.to(dt))(torch.arange(L), log_dt.dtype)
        P = torch.exp((A * dt[:, None])[:, :, None] * pos[None, None, :])
        K = 2.0 * torch.einsum("dn,dnl->dl", C, P).real
        L2 = 2 * L
        u_t = (lambda x, *d: x.permute(*d))(u, 0, 2, 1)
        Kf = (lambda x, *a, **k: torch.fft.rfft(x.float(), *a, **k))(K, L2)
        Uf = (lambda x, *a, **k: torch.fft.rfft(x.float(), *a, **k))(u_t, L2)
        y = (lambda x, *a, **k: torch.fft.irfft(x, *a, **k).to(torch.bfloat16))(Uf * Kf[None, :, :], L2)[:, :, :L]
        y = (lambda x, *d: x.permute(*d))(y, 0, 2, 1)
        return y + u * D_skip[None, None, :]

    def _B_ref(x, w1, b1, w2, b2):
        B, S, D = x.shape
        h = _layernorm(x, axis=-1)
        u = torch.einsum("bsd,sf->bdf", h, w1) + b1
        u = _gelu(u)
        y = torch.einsum("bdf,fs->bds", u, w2) + b2
        return (lambda x, *d: x.permute(*d))(y, 0, 2, 1)

    x = A_u
    xn = _layernorm(x, axis=-1)
    return x + _A_ref(xn, A_log_A_real, A_A_imag, A_C_real, A_C_imag, A_log_dt, A_D_skip) + _B_ref(xn, B_w1, B_b1, B_w2, B_b2)
```

```python
import re

TRANS = {"v_exp_f32","v_log_f32","v_rcp_f32","v_rsq_f32","v_sqrt_f32","v_sin_f32","v_cos_f32","v_rcp_iflag_f32",
         "v_exp_f16","v_log_f16","v_rcp_f16","v_rsq_f16","v_sqrt_f16","v_sin_f16","v_cos_f16"}

REG_RE = re.compile(r"\b([vsa])(\d+)\b|\b([vsa])\[(\d+):(\d+)\]|\b(vcc|exec|m0|vcc_lo|vcc_hi|exec_lo|exec_hi)\b")

def regs_of(opnd):
    out = set()
    for m in REG_RE.finditer(opnd):
        if m.group(1):
            out.add((m.group(1), int(m.group(2))))
        elif m.group(3):
            for i in range(int(m.group(4)), int(m.group(5)) + 1):
                out.add((m.group(3), i))
        else:
            n = m.group(6)
            if n.startswith("vcc"): out.add(("vcc", 0))
            elif n.startswith("exec"): out.add(("exec", 0))
            else: out.add(("m0", 0))
    return out

def split_ops(s):
    ops, depth, cur = [], 0, ""
    for ch in s:
        if ch == "[": depth += 1
        if ch == "]": depth -= 1
        if ch == "," and depth == 0:
            ops.append(cur.strip()); cur = ""
        else:
            cur += ch
    if cur.strip(): ops.append(cur.strip())
    return ops

class Ins:
    __slots__ = ("text","mn","ops","kind","w","r","passes","srcc","dtuple","is_dpp","nop","line")
    def __init__(self, text):
        self.text = text
        t = text.split(";")[0].strip()
        parts = t.split(None, 1)
        self.mn = parts[0] if parts else ""
        rest = parts[1] if len(parts) > 1 else ""
        self.ops = split_ops(rest)
        self.w, self.r = set(), set()
        self.passes = 0; self.srcc = set(); self.dtuple = None
        self.is_dpp = ("row_" in rest or "quad_perm" in rest or "wave_" in rest or "dpp" in self.mn)
        self.nop = 0
        mn = self.mn
        o = self.ops
        def R(i): return regs_of(o[i]) if i < len(o) else set()
        allr = set()
        for x in o: allr |= regs_of(x)
        if mn == "s_nop":
            self.kind = "nop"; self.nop = int(o[0], 0) + 1
        elif mn.startswith("v_mfma"):
            self.kind = "mfma"
            self.w = R(0); self.r = R(1) | R(2) | R(3); self.srcc = R(3)
            self.dtuple = (mn, o[0])
            self.passes = 8 if "32x32" in mn else 4
            if "f32_32x32x2_f32" in mn: self.passes = 16
            if "f32_16x16x4_f32" in mn: self.passes = 8
        elif mn.startswith("v_"):
            self.kind = "valu"
            if mn.startswith("v_cmp"):
                self.w = R(0); self.r = allr - R(0) | (R(0) & set())
                self.r = set()
                for x in o[1:]: self.r |= regs_of(x)
                if mn.startswith("v_cmpx"): self.w |= {("exec", 0)}
            elif mn.startswith("v_permlane") and "swap" in mn:
                self.w = R(0) | R(1); self.r = R(0) | R(1)
            elif mn in ("v_add_co_u32","v_sub_co_u32","v_subrev_co_u32","v_addc_co_u32","v_subb_co_u32","v_add_co_u32_e32","v_addc_co_u32_e32"):
                self.w = R(0) | R(1)
                for x in o[2:]: self.r |= regs_of(x)
            elif mn in ("v_div_scale_f32",):
                self.w = R(0) | R(1)
                for x in o[2:]: self.r |= regs_of(x)
            else:
                self.w = R(0)
                for x in o[1:]: self.r |= regs_of(x)
                if mn.startswith(("v_fmac","v_fmaak","v_fmamk","v_pk_fmac","v_dot2c","v_mac")): self.r |= R(0)
                if mn.startswith("v_cndmask") and len(o) == 3: self.r |= {("vcc", 0)}
                if mn.startswith("v_div_fmas"): self.r |= {("vcc", 0)}
                if self.is_dpp and "bound_ctrl" not in rest: self.r |= R(0)
        elif mn.startswith("ds_"):
            self.kind = "ds"
            if mn.startswith(("ds_read","ds_bpermute","ds_permute","ds_swizzle")):
                self.w = R(0)
                for x in o[1:]: self.r |= regs_of(x)
            else:
                self.r = allr
        elif mn.startswith(("buffer_","global_","flat_","scratch_")):
            self.kind = "vmem"
            if "load" in mn and " lds" not in (" " + rest) and not mn.startswith("global_load_lds"):
                self.w = R(0)
                for x in o[1:]: self.r |= regs_of(x)
            else:
                self.r = allr
                if " lds" in (" " + rest) or mn.startswith("global_load_lds"): self.r |= {("m0", 0)}
        elif mn.startswith("s_"):
            self.kind = "salu"
            if mn.startswith(("s_cmp","s_waitcnt","s_barrier","s_branch","s_cbranch","s_endpgm","s_setprio","s_sleep","s_bitcmp")):
                self.r = allr
            elif mn.startswith(("s_and_saveexec","s_or_saveexec","s_andn2_saveexec")):
                self.w = R(0) | {("exec", 0)}
                for x in o[1:]: self.r |= regs_of(x)
            else:
                self.w = R(0)
                for x in o[1:]: self.r |= regs_of(x)
        else:
            self.kind = "other"

def is_ins(line):
    t = line.split(";")[0].strip()
    return bool(t) and not t.endswith(":") and not t.startswith(".")

def fix_hazards(lines):
    out = []
    hist = []
    pos = 0
    for line in lines:
        if not is_ins(line):
            out.append(line); continue
        ins = Ins(line)
        need = 0
        for (p, ppos) in reversed(hist[-40:]):
            dist = pos - ppos
            req = 0
            if p.kind == "valu":
                pw_v = {x for x in p.w if x[0] in ("v","a")}
                pw_s = {x for x in p.w if x[0] in ("s","vcc")}
                if ins.kind == "mfma" and pw_v & ins.r: req = max(req, 2)
                if ins.kind == "valu":
                    if p.mn in TRANS and ins.mn not in TRANS and pw_v & ins.r: req = max(req, 1)
                    if ins.is_dpp and pw_v & ins.r: req = max(req, 2)
                    if ins.mn.startswith("v_permlane") and pw_v & ins.r: req = max(req, 2)
                    if ins.mn.startswith(("v_readfirstlane","v_readlane")) and pw_v & ins.r: req = max(req, 1)
                    if pw_s & ins.r: req = max(req, 2)
                    if ins.mn.startswith("v_div_fmas") and ("vcc",0) in p.w: req = max(req, 4)
                    if ("op_sel" in p.text or "sdwa" in p.text) and pw_v & (ins.r | ins.w): req = max(req, 1)
                if ins.kind == "vmem" and pw_s & ins.r: req = max(req, 5)
                if ins.kind == "salu" and pw_s & ins.r: req = max(req, 1)
                if ("exec",0) in p.w and ins.kind == "mfma": req = max(req, 4)
            elif p.kind == "mfma":
                P = p.passes
                if ins.kind == "mfma":
                    if p.w & ins.srcc:
                        exact = (ins.dtuple is not None and ins.ops[3] == p.ops[0] and ins.mn == p.mn)
                        req = max(req, ({2:2,4:0,8:0,16:0} if exact else {2:4,4:6,8:10,16:18})[P])
                    ab = regs_of(ins.ops[1]) | regs_of(ins.ops[2])
                    if p.w & ab: req = max(req, {2:5,4:8,8:12,16:20}[P])
                else:
                    if p.w & (ins.r | ins.w): req = max(req, {2:5,4:8,8:12,16:20}[P])
                    if ins.kind == "valu" and p.srcc & ins.w: req = max(req, {2:1,4:3,8:7,16:15}[P])
            elif p.kind == "salu":
                if ("m0",0) in p.w and ("m0",0) in ins.r and ins.kind in ("vmem","ds"): req = max(req, 1)
            elif p.kind == "vmem":
                if "store" in p.mn and ("x4" in p.mn or "x3" in p.mn):
                    data = regs_of(p.ops[0]) if p.mn.startswith("buffer") else regs_of(p.ops[1])
                    if ins.w & data: req = max(req, 2)
            if req > dist:
                need = max(need, req - dist)
        while need > 0:
            n = min(need, 16)
            out.append("    s_nop %d" % (n - 1))
            pos += n
            need -= n
        out.append(line)
        hist.append((ins, pos + (ins.nop if ins.kind == "nop" else 1)))
        pos += ins.nop if ins.kind == "nop" else 1
    return out

class Kern:
    def __init__(self, name):
        self.name = name; self.lines = []
    def __call__(self, s):
        for ln in s.strip("\n").split("\n"):
            ln = ln.strip()
            if ln: self.lines.append("    " + ln)
    def label(self, l): self.lines.append(l + ":")
    def c(self, s): self.lines.append("    ; " + s)
    def text(self): return "\n".join(fix_hazards(self.lines)) + "\n"
```

```python
from asmlib import *

WS_XN = 0x000000
WS_H  = 0x200000
WS_UT = 0x400000
UT_PITCH = 4160
WS_KD = 0x680000
KD_PITCH = 2048
WS_U  = 0x800000
WS_YT = 0xA00000
WS_BYTES = 268435456

KARG = dict(x=0, loga=8, aim=16, cre=24, cim=32, logdt=40, dskip=48, bx=56, w1=64, b1=72, w2=80, b2=88, out=96, dbg=104, ws=112)
NBYTES = dict(x=2048*512*2, loga=512*128*2, aim=512*128*2, cre=512*128*2, cim=512*128*2, logdt=1024, dskip=1024,
              w1=2048*1792*2, b1=1792*2, w2=1792*2048*2, b2=2048*2, out=2048*512*2)

def load_ptr(k, s, name):
    k(f"s_load_dwordx2 s[{s}:{s+1}], s[0:1], {KARG[name]}")

def mk_srd(k, sd, sp, nbytes, off=0):
    if off:
        k(f"s_add_u32 s{sd}, s{sp}, {off:#x}")
        k(f"s_addc_u32 s{sd+1}, s{sp+1}, 0")
    else:
        k(f"s_mov_b32 s{sd}, s{sp}")
        k(f"s_mov_b32 s{sd+1}, s{sp+1}")
    k(f"s_mov_b32 s{sd+2}, {nbytes:#x}")
    k(f"s_mov_b32 s{sd+3}, 0x20000")

def allreduce_add(k, v, t):
    for r in (8, 4, 2, 1):
        k(f"v_add_f32_dpp {v}, {v}, {v} row_ror:{r} row_mask:0xf bank_mask:0xf")
    k(f"v_mov_b32 {t}, {v}")
    k(f"v_permlane16_swap_b32 {v}, {t}")
    k(f"v_add_f32 {v}, {v}, {t}")
    k(f"v_mov_b32 {t}, {v}")
    k(f"v_permlane32_swap_b32 {v}, {t}")
    k(f"v_add_f32 {v}, {v}, {t}")

def rne_bf16(k, dst, src, tmp):
    k(f"v_cvt_pk_bf16_f32 {tmp}, {src}, {src}")
    k(f"v_lshlrev_b32 {dst}, 16, {tmp}")

HEADER_TMPL = """; generated by work/gen.py -- do not edit by hand
{launches}
.amdgcn_target "amdgcn-amd-amdhsa--gfx950"
.text
"""

def kernel_text(k, vgprs, sgprs=102, accum=None):
    if accum is None: accum = (vgprs + 3) // 4 * 4
    body = f".globl {k.name}\n.p2align 8\n.type {k.name},@function\n{k.name}:\n" + k.text() + "    s_endpgm\n"
    kd = f""".section .rodata,"a"
.p2align 6
.amdhsa_kernel {k.name}
  .amdhsa_next_free_vgpr {vgprs}
  .amdhsa_next_free_sgpr {sgprs}
  .amdhsa_accum_offset {accum}
  .amdhsa_group_segment_fixed_size 0
  .amdhsa_kernarg_size 120
  .amdhsa_user_sgpr_count 2
  .amdhsa_user_sgpr_kernarg_segment_ptr 1
  .amdhsa_system_sgpr_workgroup_id_x 1
.end_amdhsa_kernel
.text
"""
    return body + kd
```

```python
from gen_common import *
UCOPY = 8 * UT_PITCH
KREV_BASE = 2 * UCOPY
KREV_SZ = 7680

def gen_conv(k):
    load_ptr(k, 4, "ws")
    k("v_lshrrev_b32 v70, 6, v0"); k("v_readfirstlane_b32 s43, v70")
    k("v_and_b32 v71, 63, v0")
    k("s_lshr_b32 s44, s43, 1"); k("s_and_b32 s45, s43, 1")
    k("s_sub_u32 s46, s2, 256"); k("s_lshl_b32 s46, s46, 1"); k("s_add_u32 s46, s46, s44")
    k(f"s_mul_i32 s47, s44, {UCOPY}")
    k(f"s_mul_i32 s48, s44, {KREV_SZ}"); k(f"s_add_u32 s48, s48, {KREV_BASE}")
    k("s_waitcnt lgkmcnt(0)")
    mk_srd(k, 8, 4, 0xC00000)
    k(f"s_mul_i32 s49, s46, {KD_PITCH}"); k(f"s_add_u32 s49, s49, {WS_KD:#x}")
    k("v_lshlrev_b32 v72, 4, v71")
    k("buffer_load_dwordx4 v[0:3], v72, s[8:11], s49 offen")
    k("v_cmp_gt_u32 vcc, 32, v71"); k("s_and_saveexec_b64 s[50:51], vcc")
    k("buffer_load_dwordx4 v[4:7], v72, s[8:11], s49 offen offset:1024")
    k("s_mov_b64 exec, s[50:51]")
    k("v_mov_b32 v73, 0"); k("buffer_load_dword v74, v73, s[8:11], s49 offen offset:1536")
    k("s_lshl_b32 s50, s45, 11")
    k("s_add_u32 s50, s50, s47")
    k("v_add_u32 v73, s50, v72")
    k("s_waitcnt vmcnt(1)")
    k("ds_write_b128 v73, v[0:3]")
    k("v_cmp_gt_u32 vcc, 32, v71"); k("s_and_saveexec_b64 s[52:53], vcc")
    k("ds_write_b128 v73, v[4:7] offset:1024")
    k("s_mov_b64 exec, s[52:53]")
    k("s_waitcnt lgkmcnt(0)")
    k("s_lshl_b32 s51, s45, 10")
    for e in range(16):
        k(f"v_add_u32 v8, s51, v71"); k(f"v_add_u32 v8, {64*e}, v8")
        k("v_sub_u32 v9, 0x7ff, v8")
        k("v_ffbh_u32 v10, v9"); k("v_sub_u32 v10, 24, v10"); k("v_max_i32 v10, 0, v10")
        k("v_min_u32 v10, 3, v10")
        k("v_cmp_gt_u32 vcc, 0x100, v9"); k("v_cndmask_b32 v10, v10, 0, vcc")
        k("v_lshrrev_b32 v11, v10, v9"); k("v_and_b32 v11, 1, v11")
        k("v_lshlrev_b32 v12, v10, 1"); k("v_lshrrev_b32 v12, 1, v12")
        k("v_add3_u32 v11, v9, v12, v11"); k("v_add_u32 v11, -1, v11")
        k("v_cmp_eq_u32 vcc, 0, v10"); k("v_cndmask_b32 v11, v11, v9, vcc")
        k("v_lshrrev_b32 v11, v10, v11"); k("v_lshlrev_b32 v11, v10, v11")
        k("v_and_b32 v12, 7, v11")
        k("v_bfe_u32 v13, v11, 3, 4")
        k("v_lshrrev_b32 v14, 7, v11")
        k("v_lshl_add_u32 v15, v14, 3, v12")
        k("v_lshrrev_b32 v16, 1, v12"); k("v_lshl_add_u32 v16, v14, 2, v16"); k("v_add_u32 v16, 8, v16")
        k("v_lshrrev_b32 v17, 2, v12"); k("v_lshl_add_u32 v17, v14, 1, v17"); k("v_add_u32 v17, 16, v17")
        k("v_add_u32 v18, 24, v14")
        k("v_cmp_gt_u32 vcc, 0x400, v11"); k("v_cndmask_b32 v18, v18, v17, vcc")
        k("v_cmp_gt_u32 vcc, 0x200, v11"); k("v_cndmask_b32 v18, v18, v16, vcc")
        k("v_cmp_gt_u32 vcc, 0x100, v11"); k("v_cndmask_b32 v18, v18, v15, vcc")
        k("v_lshl_add_u32 v18, v18, 4, v13"); k("v_lshl_add_u32 v18, v18, 1, s50")
        k(f"ds_read_u16 v{20+e}, v18")
        k("v_lshrrev_b32 v12, 3, v8"); k("v_lshrrev_b32 v13, 2, v12"); k("v_add_u32 v12, v12, v13")
        k("v_and_b32 v13, 7, v8"); k("v_lshlrev_b32 v13, 1, v13"); k("v_lshl_add_u32 v12, v12, 4, v13")
        k(f"v_add_u32 v{36+e}, s48, v12")
    k("s_waitcnt lgkmcnt(0)")
    for e in range(16): k(f"ds_write_b16 v{36+e}, v{20+e}")
    for i in range(4): k(f"v_mov_b32 v{20+i}, 0")
    k("s_lshl_b32 s52, s45, 6"); k("v_add_u32 v8, s52, v71"); k("v_add_u32 v8, 0x100, v8")
    k("v_cmp_gt_u32 vcc, 380, v8"); k("s_and_saveexec_b64 s[52:53], vcc")
    k("v_lshrrev_b32 v9, 2, v8"); k("v_add_u32 v9, v9, v8"); k("v_lshl_add_u32 v9, v9, 4, s48")
    k("ds_write_b128 v9, v[20:23]")
    k("s_mov_b64 exec, s[52:53]")
    k("s_waitcnt lgkmcnt(0)"); k("s_barrier")
    k(f"s_mul_i32 s52, s46, {UT_PITCH}"); k(f"s_add_u32 s52, s52, {WS_UT:#x}")
    for rnd in range(3):
        k(f"s_lshl_b32 s53, s45, 6"); k(f"v_add_u32 v8, s53, v71"); k(f"v_add_u32 v8, {128*rnd}, v8")
        k("v_cmp_gt_u32 vcc, 260, v8"); k("s_and_saveexec_b64 s[54:55], vcc")
        k("v_lshlrev_b32 v9, 4, v8")
        k("buffer_load_dwordx4 v[12:15], v9, s[8:11], s52 offen")
        k("buffer_load_dwordx4 v[16:19], v9, s[8:11], s52 offen offset:16")
        k("v_add_u32 v10, s47, v9")
        k("s_waitcnt vmcnt(0)")
        for s in range(8):
            if s % 2 == 0:
                a = 12 + s // 2
                if a % 4 == 0: k(f"ds_write_b128 v10, v[{a}:{a+3}] offset:{s*UT_PITCH}")
                else:
                    for i in range(4): k(f"v_mov_b32 v{20+i}, v{a+i}")
                    k(f"ds_write_b128 v10, v[20:23] offset:{s*UT_PITCH}")
            else:
                a = 12 + (s - 1) // 2
                for i in range(4): k(f"v_alignbit_b32 v{20+i}, v{a+i+1}, v{a+i}, 16")
                k(f"ds_write_b128 v10, v[20:23] offset:{s*UT_PITCH}")
        k("s_mov_b64 exec, s[54:55]")
    k("s_waitcnt lgkmcnt(0)"); k("s_barrier")
    k("v_lshrrev_b32 v8, 5, v71"); k("v_and_b32 v9, 31, v71")
    k("s_lshl_b32 s52, s45, 1"); k("v_add_u32 v10, s52, v8"); k("v_sub_u32 v10, 379, v10")
    k("v_lshrrev_b32 v11, 2, v10"); k("v_add_u32 v10, v10, v11"); k("v_lshlrev_b32 v10, 4, v10")
    k("v_mul_u32_u24 v11, 80, v9"); k("v_sub_u32 v10, v10, v11"); k(f"v_add_u32 v10, {-80*63 & 0xffffffff:#x}, v10")
    k("v_add_u32 v68, s48, v10")
    k("v_add_u32 v10, 1, v9"); k("v_and_b32 v10, 7, v10")
    k("s_lshl_b32 s52, s45, 4"); k("v_lshlrev_b32 v11, 3, v8"); k("v_add_u32 v11, s52, v11")
    k("v_sub_u32 v12, v9, v10"); k("v_sub_u32 v12, v12, v11"); k(f"v_add_u32 v12, {1017 - 32*63 & 0xffffffff:#x}, v12")
    k(f"v_mul_u32_u24 v13, {UT_PITCH}, v10"); k("v_lshl_add_u32 v12, v12, 1, v13")
    k("v_add_u32 v69, s47, v12"); k("v_add_u32 v69, 0x800, v69")
    FR = lambda n: 32 + 12 * (n % 3)
    def reads(n):
        f = FR(n); off = 63 - n
        k(f"ds_read_b128 v[{f}:{f+3}], v68 offset:{80*off}")
        k(f"ds_read_b128 v[{f+4}:{f+7}], v69 offset:{64*off}")
        if n < 32: k(f"ds_read_b128 v[{f+8}:{f+11}], v69 offset:{64*off - 2048}")
    cnt = lambda n: 3 if n < 32 else 2
    reads(0); reads(1)
    for n in range(64):
        if n + 2 < 64: reads(n + 2)
        pend = sum(cnt(x) for x in range(n + 1, min(n + 3, 64)))
        k(f"s_waitcnt lgkmcnt({pend})")
        f = FR(n)
        c1 = "0" if n == 0 else "v[16:31]"; c0 = "0" if n == 0 else "v[0:15]"
        k(f"v_mfma_f32_32x32x16_f16 v[16:31], v[{f}:{f+3}], v[{f+4}:{f+7}], {c1}")
        if n < 32: k(f"v_mfma_f32_32x32x16_f16 v[0:15], v[{f}:{f+3}], v[{f+8}:{f+11}], {c0}")
    k("s_barrier"); k("s_nop 7"); k("s_nop 7")
    k("s_lshl_b32 s52, s43, 12"); k("v_lshl_add_u32 v70, v71, 4, s52")
    k("s_cmp_eq_u32 s45, 0"); k("s_cbranch_scc1 K2C_W1")
    for i in range(4): k(f"ds_write_b128 v70, v[{4*i}:{4*i+3}] offset:{1024*i}")
    k("s_branch K2C_W2")
    k.label("K2C_W1")
    for i in range(4): k(f"ds_write_b128 v70, v[{16+4*i}:{16+4*i+3}] offset:{1024*i}")
    k.label("K2C_W2")
    k("s_waitcnt lgkmcnt(0)"); k("s_barrier")
    k("s_xor_b32 s52, s43, 1"); k("s_lshl_b32 s52, s52, 12"); k("v_lshl_add_u32 v70, v71, 4, s52")
    for i in range(4): k(f"ds_read_b128 v[{32+4*i}:{32+4*i+3}], v70 offset:{1024*i}")
    k("s_cmp_eq_u32 s45, 0"); k("s_cbranch_scc1 K2C_F0")
    for i in range(16): k(f"v_mov_b32 v{i}, v{16+i}")
    k.label("K2C_F0")
    k("s_waitcnt lgkmcnt(0) vmcnt(0)")
    for i in range(16): k(f"v_add_f32 v{i}, v{i}, v{32+i}")
    for i in range(16): k(f"v_mul_f32 v{i}, v{i}, v74")
    for i in range(16): k(f"v_cvt_pk_bf16_f32 v{i}, v{i}, v{i}")
    k("v_lshrrev_b32 v72, 5, v71"); k("v_and_b32 v73, 31, v71")
    k("v_lshl_add_u32 v70, v72, 7, v73"); k("v_lshlrev_b32 v70, 1, v70")
    k("s_lshl_b32 s52, s46, 12"); k("s_lshl_b32 s53, s45, 11"); k("s_add_u32 s52, s52, s53"); k(f"s_add_u32 s52, s52, {WS_YT:#x}")
    for i in range(16): k(f"buffer_store_short v{i}, v70, s[8:11], s52 offen offset:{64*(8*(i>>2)+(i&3))}")
```

```python
from gen_common import *

import os
NSLOT = int(os.environ.get("NSLOT", "5"))
RING = NSLOT * 4096
ACC0 = 0
FR0 = 64
VA0, VA1, VB0, VB1, VRD0, VRD1, VLANE = 96, 97, 98, 99, 100, 101, 102
S_RING, S_KA, S_KB, S_W = 40, 41, 42, 43

def accr(m, n): return ACC0 + 16 * (m + 2 * n)

def gemm_setup(k, pitchB, s_d0x2, s_n0x2):
    k(f"v_lshrrev_b32 v{VLANE}, 6, v0"); k(f"v_readfirstlane_b32 s{S_W}, v{VLANE}")
    k(f"v_and_b32 v{VLANE}, 63, v0")
    k(f"s_mul_i32 s{S_RING}, s{S_W}, {RING}")
    k(f"v_lshrrev_b32 v103, 3, v{VLANE}")
    k(f"v_bfe_u32 v104, v{VLANE}, 4, 1"); k("v_lshlrev_b32 v104, 2, v104")
    k(f"v_and_b32 v105, 7, v{VLANE}"); k("v_xor_b32 v105, v105, v104"); k("v_lshlrev_b32 v105, 4, v105")
    k(f"s_lshl_b32 s44, s{S_W}, 4")
    k("v_add_u32 v103, s44, v103")
    k(f"v_lshlrev_b32 v{VA0}, 10, v103"); k(f"v_add3_u32 v{VA0}, v{VA0}, v105, s{s_d0x2}")
    k(f"v_add_u32 v{VA1}, 0x2000, v{VA0}")
    k(f"v_mul_u32_u24 v{VB0}, {pitchB}, v103"); k(f"v_add3_u32 v{VB0}, v{VB0}, v105, s{s_n0x2}")
    k(f"v_add_u32 v{VB1}, {8*pitchB}, v{VB0}")
    k(f"v_lshrrev_b32 v103, 5, v{VLANE}"); k("v_lshlrev_b32 v103, 3, v103")
    k(f"v_bfe_u32 v104, v{VLANE}, 2, 2"); k("v_add_u32 v103, v103, v104"); k("v_lshlrev_b32 v103, 7, v103")
    k(f"v_bfe_u32 v104, v{VLANE}, 4, 1"); k("v_lshlrev_b32 v104, 5, v104"); k("v_add_u32 v103, v103, v104")
    k(f"v_and_b32 v104, 3, v{VLANE}"); k("v_lshlrev_b32 v104, 3, v104"); k("v_add_u32 v103, v103, v104")
    k(f"v_bfe_u32 v104, v{VLANE}, 3, 1"); k("v_lshlrev_b32 v104, 6, v104"); k("v_add_u32 v103, v103, v104")
    k(f"v_add_u32 v{VRD0}, s{S_RING}, v103"); k(f"v_xor_b32 v{VRD1}, 64, v{VRD0}")
    k(f"s_mov_b32 s{S_KA}, 0"); k(f"s_mov_b32 s{S_KB}, 0")

def issue_dma(k, s, pitchB, srdA, srdB):
    slot = s % NSLOT
    for op, (v_0, v_1, srd, sk) in enumerate(((VA0, VA1, srdA, S_KA), (VB0, VB1, srdB, S_KB))):
        for i, v in enumerate((v_0, v_1)):
            k(f"s_add_u32 m0, s{S_RING}, {slot*4096 + op*2048 + i*1024}")
            k(f"buffer_load_dwordx4 v{v}, s[{srd}:{srd+3}], s{sk} offen lds")
    k(f"s_add_u32 s{S_KA}, s{S_KA}, 0x10000"); k(f"s_add_u32 s{S_KB}, s{S_KB}, {64*pitchB}")

def issue_reads(k, s):
    if os.environ.get("NOREAD"): return
    slot = s % NSLOT; fr = FR0 + 16 * (s & 1)
    for op in range(2):
        for m in range(2):
            for q in range(2):
                r = fr + 8*op + 4*m + 2*q
                k(f"ds_read_b64_tr_b16 v[{r}:{r+1}], v{VRD1 if m else VRD0} offset:{slot*4096 + op*2048 + q*512}")

def issue_mfma(k, s):
    if os.environ.get("NOMFMA"): return
    fr = FR0 + 16 * (s & 1)
    for m in range(2):
        for n in range(2):
            a = accr(m, n); c = "0" if s == 0 else f"v[{a}:{a+15}]"
            k(f"v_mfma_f32_32x32x16_bf16 v[{a}:{a+15}], v[{fr+4*m}:{fr+4*m+3}], v[{fr+8+4*n}:{fr+8+4*n+3}], {c}")

def gemm_main(k, S, pitchB, srdA, srdB):
    D = NSLOT - 1
    for s in range(min(D, S)): issue_dma(k, s, pitchB, srdA, srdB)
    issued = min(D, S)
    k(f"s_waitcnt vmcnt({4*(issued-1)})"); issue_reads(k, 0)
    for s in range(S):
        if s + 1 < S:
            k(f"s_waitcnt vmcnt({4*(issued-1-(s+1))})"); issue_reads(k, s + 1)
            k("s_waitcnt lgkmcnt(8)")
        else:
            k("s_waitcnt lgkmcnt(0)")
        issue_mfma(k, s)
        if issued < S:
            issue_dma(k, issued, pitchB, srdA, srdB); issued += 1

def gemm_reduce(k):
    k("s_barrier")
    k(f"s_lshl_b32 s45, s{S_W}, 14"); k(f"v_lshl_add_u32 v103, v{VLANE}, 4, s45")
    for i in range(16): k(f"ds_write_b128 v103, v[{4*i}:{4*i+3}] offset:{1024*i}")
    k("s_waitcnt lgkmcnt(0)"); k("s_barrier")
    k(f"s_lshl_b32 s45, s{S_W}, 12"); k(f"v_lshl_add_u32 v103, v{VLANE}, 4, s45")
    for src in range(4):
        for i in range(4): k(f"ds_read_b128 v[{16*src+4*i}:{16*src+4*i+3}], v103 offset:{16384*src + 1024*i}")
    k("s_waitcnt lgkmcnt(0)")
    for i in range(16):
        k(f"v_add_f32 v{i}, v{i}, v{16+i}"); k(f"v_add_f32 v{32+i}, v{32+i}, v{48+i}"); k(f"v_add_f32 v{i}, v{i}, v{32+i}")

def unpack(k, lo, hi, pk):
    k(f"v_lshlrev_b32 v{lo}, 16, v{pk}"); k(f"v_and_b32 v{hi}, 0xffff0000, v{pk}")

GC1 = -2.0 * 1.4426950408889634 * 0.7978845608028654
GC2 = GC1 * 0.044715
import struct
def fbits(x): return struct.unpack("<I", struct.pack("<f", x))[0]

def gen_gemm1(k, end_label):
    k("s_and_b32 s46, s2, 7"); k("s_lshr_b32 s47, s2, 3"); k("s_lshr_b32 s48, s47, 3"); k("s_lshl_b32 s48, s48, 3")
    k("s_add_u32 s46, s46, s48")
    k("s_cmp_ge_u32 s46, 28"); k(f"s_cbranch_scc1 {end_label}")
    k("s_and_b32 s47, s47, 7")
    load_ptr(k, 4, "ws"); load_ptr(k, 6, "w1"); load_ptr(k, 20, "b1")
    k("s_lshl_b32 s48, s47, 7"); k("s_lshl_b32 s49, s46, 7")
    k("s_waitcnt lgkmcnt(0)")
    mk_srd(k, 8, 4, 2048*1024, WS_H); mk_srd(k, 12, 6, NBYTES["w1"]); mk_srd(k, 16, 20, NBYTES["b1"]); mk_srd(k, 24, 4, 0xC00000)
    gemm_setup(k, 3584, 48, 49)
    gemm_main(k, 32, 3584, 8, 12)
    k(f"s_lshr_b32 s50, s{S_W}, 1"); k("s_lshl_b32 s50, s50, 6"); k("s_add_u32 s50, s50, s49")
    k(f"v_and_b32 v104, 31, v{VLANE}"); k("v_lshlrev_b32 v105, 1, v104")
    k("buffer_load_ushort v106, v105, s[16:19], s50 offen")
    gemm_reduce(k)
    k(f"s_mov_b32 s51, {fbits(GC1):#x}"); k(f"s_mov_b32 s52, {fbits(GC2):#x}")
    k("s_waitcnt vmcnt(0)"); k("v_lshlrev_b32 v106, 16, v106")
    for i in range(0, 16, 2):
        a, b = i, i + 1
        k(f"v_cvt_pk_bf16_f32 v16, v{a}, v{b}"); unpack(k, a, b, 16)
        k(f"v_add_f32 v{a}, v{a}, v106"); k(f"v_add_f32 v{b}, v{b}, v106")
        k(f"v_cvt_pk_bf16_f32 v16, v{a}, v{b}"); unpack(k, a, b, 16)
        for x, t in ((a, 17), (b, 18)):
            k(f"v_mul_f32 v{t}, v{x}, v{x}"); k(f"v_mov_b32 v19, s51"); k(f"v_fmac_f32 v19, s52, v{t}")
            k(f"v_mul_f32 v{t}, v19, v{x}"); k(f"v_exp_f32 v{t}, v{t}"); k(f"v_add_f32 v{t}, 1.0, v{t}")
            k(f"v_rcp_f32 v{t}, v{t}"); k(f"v_mul_f32 v{x}, v{x}, v{t}")
        k(f"v_cvt_pk_bf16_f32 v{20 + i//2}, v{a}, v{b}")
    k("v_lshlrev_b32 v105, 10, v104"); k(f"v_lshrrev_b32 v106, 5, v{VLANE}"); k("v_lshl_add_u32 v105, v106, 3, v105")
    k("s_lshl_b32 s50, s50, 9"); k(f"s_and_b32 s51, s{S_W}, 1"); k("s_lshl_b32 s51, s51, 6"); k("s_add_u32 s51, s51, s48")
    k("s_add_u32 s50, s50, s51"); k(f"s_add_u32 s50, s50, {WS_U:#x}")
    for j in range(4): k(f"buffer_store_dwordx2 v[{20+2*j}:{21+2*j}], v105, s[24:27], s50 offen offset:{16*j}")

def gen_k3():
    k = Kern("k3_out_kernel")
    k("s_cmp_ge_u32 s2, 256"); k("s_cbranch_scc1 K3_END")
    k("s_and_b32 s46, s2, 7"); k("s_lshr_b32 s47, s2, 3"); k("s_lshr_b32 s48, s47, 3"); k("s_lshl_b32 s48, s48, 3")
    k("s_add_u32 s46, s46, s48"); k("s_and_b32 s47, s47, 7")
    load_ptr(k, 4, "ws"); load_ptr(k, 6, "w2"); load_ptr(k, 20, "b2"); load_ptr(k, 22, "x"); load_ptr(k, 54, "dskip"); load_ptr(k, 56, "out")
    k("s_lshl_b32 s48, s47, 7"); k("s_lshl_b32 s49, s46, 7")
    k("s_waitcnt lgkmcnt(0)")
    mk_srd(k, 8, 4, 1792*1024, WS_U); mk_srd(k, 12, 6, NBYTES["w2"]); mk_srd(k, 16, 20, NBYTES["b2"]); mk_srd(k, 24, 4, 0xC00000)
    mk_srd(k, 28, 22, NBYTES["x"]); mk_srd(k, 32, 54, NBYTES["dskip"]); mk_srd(k, 36, 56, NBYTES["out"])
    gemm_setup(k, 4096, 48, 49)
    gemm_main(k, 28, 4096, 8, 12)
    k(f"s_lshr_b32 s50, s{S_W}, 1"); k("s_lshl_b32 s50, s50, 6"); k("s_add_u32 s50, s50, s49")
    k(f"v_and_b32 v104, 31, v{VLANE}"); k("v_lshlrev_b32 v105, 1, v104")
    k("buffer_load_ushort v106, v105, s[16:19], s50 offen")
    k(f"s_and_b32 s51, s{S_W}, 1"); k("s_lshl_b32 s51, s51, 6"); k("s_add_u32 s51, s51, s48")
    k(f"v_lshrrev_b32 v107, 5, v{VLANE}"); k("v_lshlrev_b32 v107, 3, v107")
    for j in range(4): k(f"buffer_load_dwordx2 v[{64+2*j}:{65+2*j}], v107, s[32:35], s51 offen offset:{16*j}")
    k("v_lshl_add_u32 v105, v104, 10, v107")
    k("s_lshl_b32 s52, s50, 9"); k("s_add_u32 s52, s52, s51")
    for j in range(4): k(f"buffer_load_dwordx2 v[{72+2*j}:{73+2*j}], v105, s[28:31], s52 offen offset:{16*j}")
    for j in range(4): k(f"buffer_load_dwordx2 v[{80+2*j}:{81+2*j}], v105, s[24:27], s52 offen offset:{16*j}")
    k("v_lshlrev_b32 v108, 11, v107"); k("v_lshl_add_u32 v108, v104, 1, v108")
    k("s_lshl_b32 s53, s51, 11"); k("s_add_u32 s53, s53, s50"); k(f"s_add_u32 s53, s53, {WS_YT:#x}")
    for j in range(4):
        k(f"s_add_u32 s58, s53, {j*8*4096}")
        for r in range(4):
            if r == 0: k(f"v_mov_b32 v109, v108")
            else: k(f"v_add_u32 v109, {r*4096}, v108")
            k(f"buffer_load_ushort v{112+4*j+r}, v109, s[24:27], s58 offen")
    gemm_reduce(k)
    k("s_waitcnt vmcnt(0)"); k("v_lshlrev_b32 v106, 16, v106")
    for j in range(4):
        for h in range(2):
            a, b = 4*j + 2*h, 4*j + 2*h + 1
            k(f"v_cvt_pk_bf16_f32 v16, v{a}, v{b}"); unpack(k, a, b, 16)
            k(f"v_add_f32 v{a}, v{a}, v106"); k(f"v_add_f32 v{b}, v{b}, v106")
            k(f"v_cvt_pk_bf16_f32 v16, v{a}, v{b}"); unpack(k, a, b, 16)
            unpack(k, 17, 18, 80+2*j+h); unpack(k, 19, 20, 64+2*j+h)
            k("v_mul_f32 v17, v17, v19"); k("v_mul_f32 v18, v18, v20")
            k("v_cvt_pk_bf16_f32 v16, v17, v18"); unpack(k, 17, 18, 16)
            k(f"v_lshlrev_b32 v19, 16, v{112+4*j+2*h}"); k(f"v_lshlrev_b32 v20, 16, v{112+4*j+2*h+1}")
            k("v_add_f32 v17, v17, v19"); k("v_add_f32 v18, v18, v20")
            k("v_cvt_pk_bf16_f32 v16, v17, v18"); unpack(k, 17, 18, 16)
            unpack(k, 19, 20, 72+2*j+h)
            k("v_add_f32 v17, v17, v19"); k("v_add_f32 v18, v18, v20")
            k("v_cvt_pk_bf16_f32 v16, v17, v18"); unpack(k, 17, 18, 16)
            k(f"v_add_f32 v17, v17, v{a}"); k(f"v_add_f32 v18, v18, v{b}")
            k(f"v_cvt_pk_bf16_f32 v{24+2*j+h}, v17, v18")
    for j in range(4): k(f"buffer_store_dwordx2 v[{24+2*j}:{25+2*j}], v105, s[36:39], s52 offen offset:{16*j}")
    k.label("K3_END")
    return kernel_text(k, 128, 102)
K3_LAUNCH = "; @launch kernel=k3_out_kernel grid=(256,1,1) block=(256,1,1) lds=81920"
```

```python
from gen_common import *

L2E = 0x3fb8aa3b; L2E_LO = 0x32a57060; LN2 = 0x3f317218; INV2PI = 0x3e22f983

def allreduce4(k, vs, ts):
    for r in (8, 4, 2, 1):
        for v in vs: k(f"v_add_f32_dpp v{v}, v{v}, v{v} row_ror:{r} row_mask:0xf bank_mask:0xf")
    for sw in ("v_permlane16_swap_b32", "v_permlane32_swap_b32"):
        for v, t in zip(vs, ts): k(f"v_mov_b32 v{t}, v{v}")
        for v, t in zip(vs, ts): k(f"{sw} v{v}, v{t}")
        for v, t in zip(vs, ts): k(f"v_add_f32 v{v}, v{v}, v{t}")

def ln_pass(k, X, PK, S, T, T2, T3):
    R = range(4)
    for r in R: k(f"v_add_f32 v{S[r]}, v{X[r][0]}, v{X[r][1]}")
    for e in range(2, 8):
        for r in R: k(f"v_add_f32 v{S[r]}, v{S[r]}, v{X[r][e]}")
    allreduce4(k, S, T)
    for r in R: k(f"v_mul_f32 v{S[r]}, 0x3b000000, v{S[r]}")
    for r in R: k(f"v_sub_f32 v{T[r]}, v{X[r][0]}, v{S[r]}")
    for r in R: k(f"v_mul_f32 v{T2[r]}, v{T[r]}, v{T[r]}")
    for e in range(1, 8):
        for r in R: k(f"v_sub_f32 v{T[r]}, v{X[r][e]}, v{S[r]}")
        for r in R: k(f"v_fmac_f32 v{T2[r]}, v{T[r]}, v{T[r]}")
    allreduce4(k, T2, T)
    for r in R: k(f"v_mul_f32 v{T2[r]}, 0x3b000000, v{T2[r]}")
    for r in R: k(f"v_cvt_pk_bf16_f32 v{T[r]}, v{S[r]}, v{T2[r]}")
    for r in R: k(f"v_lshlrev_b32 v{S[r]}, 16, v{T[r]}")
    for r in R: k(f"v_and_b32 v{T2[r]}, 0xffff0000, v{T[r]}")
    for r in R: k(f"v_add_f32 v{T2[r]}, 0x3727c5ac, v{T2[r]}")
    for r in R: k(f"v_cvt_pk_bf16_f32 v{T2[r]}, v{T2[r]}, v{T2[r]}")
    for r in R: k(f"v_lshlrev_b32 v{T2[r]}, 16, v{T2[r]}")
    for r in R: k(f"v_sqrt_f32 v{T[r]}, v{T2[r]}")
    for r in R: k(f"v_rsq_f32 v{T3[r]}, v{T2[r]}")
    for r in R: k(f"v_fma_f32 v{T2[r]}, -v{T[r]}, v{T[r]}, v{T2[r]}")
    for r in R: k(f"v_mul_f32 v{T3[r]}, 0.5, v{T3[r]}")
    for r in R: k(f"v_fmac_f32 v{T[r]}, v{T2[r]}, v{T3[r]}")
    for r in R: k(f"v_cvt_pk_bf16_f32 v{T[r]}, v{T[r]}, v{T[r]}")
    for r in R: k(f"v_lshlrev_b32 v{T[r]}, 16, v{T[r]}")
    for r in R: k(f"v_rcp_f32 v{T2[r]}, v{T[r]}")
    for e in range(0, 8, 2):
        for r in R: k(f"v_sub_f32 v{X[r][e]}, v{X[r][e]}, v{S[r]}")
        for r in R: k(f"v_sub_f32 v{X[r][e+1]}, v{X[r][e+1]}, v{S[r]}")
        for r in R: k(f"v_cvt_pk_bf16_f32 v{T3[r]}, v{X[r][e]}, v{X[r][e+1]}")
        for r in R: k(f"v_lshlrev_b32 v{X[r][e]}, 16, v{T3[r]}")
        for r in R: k(f"v_and_b32 v{X[r][e+1]}, 0xffff0000, v{T3[r]}")
        for r in R: k(f"v_mul_f32 v{T3[r]}, v{X[r][e]}, v{T2[r]}")
        for r in R: k(f"v_fma_f32 v{X[r][e]}, -v{T3[r]}, v{T[r]}, v{X[r][e]}")
        for r in R: k(f"v_fmac_f32 v{T3[r]}, v{X[r][e]}, v{T2[r]}")
        for r in R: k(f"v_mul_f32 v{X[r][e]}, v{X[r][e+1]}, v{T2[r]}")
        for r in R: k(f"v_fma_f32 v{X[r][e+1]}, -v{X[r][e]}, v{T[r]}, v{X[r][e+1]}")
        for r in R: k(f"v_fmac_f32 v{X[r][e]}, v{X[r][e+1]}, v{T2[r]}")
        for r in R: k(f"v_cvt_pk_bf16_f32 v{PK[r][e//2]}, v{T3[r]}, v{X[r][e]}")
        for r in R: k(f"v_lshlrev_b32 v{X[r][e]}, 16, v{PK[r][e//2]}")
        for r in R: k(f"v_and_b32 v{X[r][e+1]}, 0xffff0000, v{PK[r][e//2]}")

def gen_ln(k):
    load_ptr(k, 4, "x"); load_ptr(k, 6, "ws")
    k("v_lshlrev_b32 v1, 4, v0")
    k("s_lshl_b32 s16, s2, 14")
    k("s_add_u32 s17, s16, 0x1000"); k("s_add_u32 s18, s16, 0x2000"); k("s_add_u32 s19, s16, 0x3000")
    k("s_waitcnt lgkmcnt(0)")
    mk_srd(k, 8, 4, NBYTES["x"]); mk_srd(k, 12, 6, 0xC00000)
    for r in range(4): k(f"buffer_load_dwordx4 v[{4+4*r}:{7+4*r}], v1, s[8:11], s{16+r} offen")
    X = [[20 + 8*r + e for e in range(8)] for r in range(4)]
    PK = [[4 + 4*r + i for i in range(4)] for r in range(4)]
    S = [52,53,54,55]; T = [56,57,58,59]; T2 = [60,61,62,63]; T3 = [64,65,66,67]
    for r in range(4):
        k(f"s_waitcnt vmcnt({3-r})")
        for i in range(4):
            k(f"v_lshlrev_b32 v{X[r][2*i]}, 16, v{PK[r][i]}")
            k(f"v_and_b32 v{X[r][2*i+1]}, 0xffff0000, v{PK[r][i]}")
    ln_pass(k, X, PK, S, T, T2, T3)
    for r in range(4): k(f"buffer_store_dwordx4 v[{PK[r][0]}:{PK[r][3]}], v1, s[12:15], s{16+r} offen")
    F = [[68 + 4*r + i for i in range(4)] for r in range(4)]
    for r in range(4):
        for i in range(4): k(f"v_cvt_pkrtz_f16_f32 v{F[r][i]}, v{X[r][2*i]}, v{X[r][2*i+1]}")
    for r in range(4): k(f"ds_write_b128 v1, v[{F[r][0]}:{F[r][3]}] offset:{4096*r}")
    PK2 = [[84 + 4*r + i for i in range(4)] for r in range(4)]
    ln_pass(k, X, PK2, S, T, T2, T3)
    k(f"v_add_u32 v2, {WS_H:#x}, v1")
    for r in range(4): k(f"buffer_store_dwordx4 v[{PK2[r][0]}:{PK2[r][3]}], v2, s[12:15], s{16+r} offen")
    k("s_waitcnt lgkmcnt(0)"); k("s_barrier")
    k("v_lshlrev_b32 v2, 2, v0")
    for row in range(16): k(f"ds_read_b32 v{20+row}, v2 offset:{1024*row}")
    k("s_mov_b32 s20, 0x05040100"); k("s_mov_b32 s21, 0x07060302")
    k(f"v_mul_u32_u24 v3, {2*UT_PITCH}, v0")
    k("s_lshl_b32 s22, s2, 5"); k(f"s_add_u32 s22, s22, {WS_UT + 64:#x}")
    k("s_waitcnt lgkmcnt(0)")
    for j in range(8):
        k(f"v_perm_b32 v{36+j}, v{21+2*j}, v{20+2*j}, s20")
        k(f"v_perm_b32 v{44+j}, v{21+2*j}, v{20+2*j}, s21")
    k("buffer_store_dwordx4 v[36:39], v3, s[12:15], s22 offen")
    k("buffer_store_dwordx4 v[40:43], v3, s[12:15], s22 offen offset:16")
    k(f"s_add_u32 s23, s22, {UT_PITCH}")
    k("buffer_store_dwordx4 v[44:47], v3, s[12:15], s23 offen")
    k("buffer_store_dwordx4 v[48:51], v3, s[12:15], s23 offen offset:16")
    k("s_cmp_lg_u32 s2, 0"); k("s_cbranch_scc1 K1_END")
    for i in range(4): k(f"v_mov_b32 v{52+i}, 0")
    for c in range(2):
        k(f"s_mov_b32 s23, {WS_UT + c*UT_PITCH:#x}")
        for i in range(4): k(f"buffer_store_dwordx4 v[52:55], v3, s[12:15], s23 offen offset:{16*i}")
    k("s_branch K1_END")

def exp_bf16(k, dst, src, t1, t2):
    k(f"v_mul_f32 v{t1}, s24, v{src}")
    k(f"v_fma_f32 v{t2}, v{src}, s24, -v{t1}")
    k(f"v_fmac_f32 v{t2}, s25, v{src}")
    k(f"v_exp_f32 v{dst}, v{t1}")
    k(f"v_mul_f32 v{t2}, v{t2}, v{dst}")
    k(f"v_fmac_f32 v{dst}, s26, v{t2}")
    k(f"v_cvt_pk_bf16_f32 v{dst}, v{dst}, v{dst}")
    k(f"v_lshlrev_b32 v{dst}, 16, v{dst}")

def gen_kgen(k):
    k.label("K1_KGEN")
    k("s_sub_u32 s3, s2, 128")
    for i, n in enumerate(("loga","aim","cre","cim","logdt","ws")): load_ptr(k, 60 + 2*i, n)
    k("v_bfe_u32 v1, v0, 4, 4"); k("v_lshlrev_b32 v1, 4, v1")
    k("s_lshl_b32 s16, s3, 8")
    k("s_lshl_b32 s17, s3, 1")
    k(f"s_mov_b32 s24, {L2E:#x}"); k(f"s_mov_b32 s25, {L2E_LO:#x}"); k(f"s_mov_b32 s26, {LN2:#x}")
    k(f"s_mov_b32 s27, {INV2PI:#x}"); k(f"s_mov_b32 s28, {L2E ^ 0x80000000:#x}")
    k("v_mov_b32 v2, 0")
    k("s_waitcnt lgkmcnt(0)")
    for i, n in enumerate(("loga","aim","cre","cim")): mk_srd(k, 32 + 4*i, 60 + 2*i, NBYTES[n])
    mk_srd(k, 48, 68, NBYTES["logdt"]); mk_srd(k, 52, 70, 0xC00000)
    k("buffer_load_ushort v3, v2, s[48:51], s17 offen")
    for i in range(4): k(f"buffer_load_dwordx4 v[{4+4*i}:{7+4*i}], v1, s[{32+4*i}:{35+4*i}], s16 offen")
    k("v_and_b32 v20, 15, v0")
    k("v_lshlrev_b32 v21, 3, v20"); k("v_cvt_f32_u32 v21, v21")
    k("v_and_b32 v22, 8, v20"); k("v_lshlrev_b32 v22, 4, v22"); k("v_and_b32 v23, 7, v20"); k("v_or_b32 v22, v22, v23")
    k("v_cvt_f32_u32 v22, v22")
    k("v_and_b32 v23, 4, v20"); k("v_lshlrev_b32 v23, 5, v23"); k("v_and_b32 v24, 3, v20"); k("v_lshl_or_b32 v23, v24, 1, v23")
    k("v_add_u32 v23, 0x100, v23")
    k("v_and_b32 v24, 6, v20"); k("v_lshlrev_b32 v24, 6, v24"); k("v_and_b32 v25, 1, v20"); k("v_lshl_or_b32 v24, v25, 2, v24")
    k("v_add_u32 v24, 0x200, v24")
    k("v_cmp_gt_u32 vcc, 8, v20"); k("v_cndmask_b32 v23, v24, v23, vcc"); k("v_cvt_f32_u32 v23, v23")
    k("v_lshlrev_b32 v24, 7, v20"); k("v_add_u32 v24, 0x400, v24"); k("v_cvt_f32_u32 v24, v24")
    P = [21, 22, 23, 24]
    k("s_waitcnt vmcnt(4)")
    k("v_lshlrev_b32 v3, 16, v3")
    exp_bf16(k, 26, 3, 27, 28)
    k("s_waitcnt vmcnt(0)")
    k("v_mov_b32 v27, 0")
    for i in range(8):
        k(f"v_and_b32 v28, 0x7fff7fff, v{12+i}")
        k("v_lshlrev_b32 v29, 16, v28"); k("v_and_b32 v28, 0xffff0000, v28")
        k("v_add_f32 v27, v27, v29"); k("v_add_f32 v27, v27, v28")
    for sw in ("v_permlane16_swap_b32", "v_permlane32_swap_b32"):
        k("v_mov_b32 v28, v27"); k(f"{sw} v27, v28"); k("v_add_f32 v27, v27, v28")
    k("v_lshrrev_b32 v28, 6, v0"); k("v_lshlrev_b32 v28, 2, v28")
    k("ds_write_b32 v28, v27 offset:12288")
    AH = lambda s, q: 100 + 4*s + q
    AL = lambda s, q: 108 + 4*s + q
    BH = lambda t, s, q: 116 + 8*t + 4*s + q
    BL = lambda t, s, q: 140 + 8*t + 4*s + q
    for st in range(8):
        s, q = st >> 2, st & 3
        src = lambda a: (f"v_lshlrev_b32 v{{}}, 16, v{4+4*a+(st>>1)}" if st % 2 == 0 else f"v_and_b32 v{{}}, 0xffff0000, v{4+4*a+(st>>1)}")
        k(src(0).format(30)); exp_bf16(k, 31, 30, 32, 33)
        k("v_mul_f32 v31, v31, v26"); k("v_mul_f32 v31, s28, v31")
        k(src(1).format(32)); k("v_mul_f32 v32, v32, v26"); k("v_mul_f32 v32, s27, v32")
        k(src(2).format(33)); k("v_mul_f32 v33, v33, v26")
        k(src(3).format(34)); k("v_mul_f32 v34, v34, v26")
        for pi in range(4):
            k(f"v_mul_f32 v{36+pi}, v31, v{P[pi]}")
            k(f"v_mul_f32 v{40+pi}, v32, v{P[pi]}")
        for pi in range(4): k(f"v_fract_f32 v{40+pi}, v{40+pi}")
        for pi in range(4): k(f"v_exp_f32 v{36+pi}, v{36+pi}")
        for pi in range(4): k(f"v_sin_f32 v{44+pi}, v{40+pi}")
        for pi in range(4): k(f"v_cos_f32 v{40+pi}, v{40+pi}")
        for pi in range(4): k(f"v_mul_f32 v{44+pi}, v{44+pi}, v{36+pi}")
        for pi in range(4): k(f"v_mul_f32 v{40+pi}, v{40+pi}, v{36+pi}")
        for t in range(3):
            k(f"v_mul_f32 v{48+t}, v33, v{41+t}"); k(f"v_mul_f32 v{52+t}, v33, v{45+t}")
        for t in range(3):
            k(f"v_fma_f32 v{48+t}, -v34, v{45+t}, v{48+t}"); k(f"v_fma_f32 v{52+t}, -v34, v{41+t}, -v{52+t}")
        pairs = [(AH(s,q), AL(s,q), 40, 44)] + [(BH(t,s,q), BL(t,s,q), 48+t, 52+t) for t in range(3)]
        for (h, l, a, b) in pairs: k(f"v_cvt_pk_bf16_f32 v{h}, v{a}, v{b}")
        for i, (h, l, a, b) in enumerate(pairs):
            k(f"v_lshlrev_b32 v56, 16, v{h}"); k(f"v_and_b32 v57, 0xffff0000, v{h}")
            k(f"v_sub_f32 v56, v{a}, v56"); k(f"v_sub_f32 v57, v{b}, v57")
            k(f"v_cvt_pk_bf16_f32 v{l}, v56, v57")
    ACC = lambda t: 164 + 4*t
    for s in range(2):
        for t in range(3):
            c = "0" if s == 0 else f"v[{ACC(t)}:{ACC(t)+3}]"
            k(f"v_mfma_f32_16x16x32_bf16 v[{ACC(t)}:{ACC(t)+3}], v[{AH(s,0)}:{AH(s,3)}], v[{BH(t,s,0)}:{BH(t,s,3)}], {c}")
            k(f"v_mfma_f32_16x16x32_bf16 v[{ACC(t)}:{ACC(t)+3}], v[{AH(s,0)}:{AH(s,3)}], v[{BL(t,s,0)}:{BL(t,s,3)}], v[{ACC(t)}:{ACC(t)+3}]")
            k(f"v_mfma_f32_16x16x32_bf16 v[{ACC(t)}:{ACC(t)+3}], v[{AL(s,0)}:{AL(s,3)}], v[{BH(t,s,0)}:{BH(t,s,3)}], v[{ACC(t)}:{ACC(t)+3}]")
    k("v_lshrrev_b32 v28, 6, v0"); k("v_mul_u32_u24 v28, 3072, v28"); k("v_and_b32 v29, 63, v0"); k("v_lshl_add_u32 v28, v29, 4, v28")
    for t in range(3): k(f"ds_write_b128 v28, v[{ACC(t)}:{ACC(t)+3}] offset:{1024*t}")
    k("s_waitcnt lgkmcnt(0)"); k("s_barrier")
    k("v_readfirstlane_b32 s20, v0"); k("s_lshr_b32 s20, s20, 6")
    k("s_cmp_ge_u32 s20, 3"); k("s_cbranch_scc1 K1_END")
    k("s_lshl_b32 s21, s20, 10")
    k("v_lshl_add_u32 v28, v29, 4, s21")
    for w in range(4): k(f"ds_read_b128 v[{4+4*w}:{7+4*w}], v28 offset:{3072*w}")
    k("v_mov_b32 v29, 0"); k("ds_read_b128 v[20:23], v29 offset:12288")
    k("s_waitcnt lgkmcnt(0)")
    for i in range(4):
        k(f"v_add_f32 v{4+i}, v{4+i}, v{8+i}"); k(f"v_add_f32 v{12+i}, v{12+i}, v{16+i}"); k(f"v_add_f32 v{4+i}, v{4+i}, v{12+i}")
    k("v_add_f32 v20, v20, v21"); k("v_add_f32 v22, v22, v23"); k("v_add_f32 v20, v20, v22")
    k("v_mul_f32 v20, v20, v26"); k("v_add_f32 v20, v20, v20")
    k("v_lshrrev_b32 v20, 23, v20"); k("v_max_u32 v20, 14, v20"); k("v_min_u32 v20, 0xfe, v20")
    k("v_sub_u32 v21, 0x10b, v20"); k("v_lshlrev_b32 v21, 23, v21")
    k("v_subrev_u32 v22, 13, v20"); k("v_lshlrev_b32 v22, 23, v22")
    k("v_add_f32 v21, v21, v21")
    for i in range(4): k(f"v_mul_f32 v{4+i}, v{4+i}, v21")
    k("v_cvt_pk_f16_f32 v4, v4, v5"); k("v_cvt_pk_f16_f32 v5, v6, v7")
    k("v_and_b32 v28, 15, v0"); k("v_bfe_u32 v29, v0, 4, 2"); k("v_lshlrev_b32 v28, 5, v28"); k("v_lshl_or_b32 v28, v29, 3, v28")
    k("s_lshl_b32 s21, s20, 9"); k("s_lshl_b32 s22, s3, 11"); k("s_add_u32 s21, s21, s22"); k(f"s_add_u32 s21, s21, {WS_KD:#x}")
    k("buffer_store_dwordx2 v[4:5], v28, s[52:55], s21 offen")
    k("s_cmp_lg_u32 s20, 0"); k("s_cbranch_scc1 K1_END")
    k("v_mov_b32 v28, 0"); k(f"s_add_u32 s22, s22, {WS_KD + 1536:#x}")
    k("buffer_store_dword v22, v28, s[52:55], s22 offen")

def gen_k1():
    k = Kern("k1_prep_kernel")
    k("s_cmp_ge_u32 s2, 640"); k("s_cbranch_scc1 K1_END")
    k("s_cmp_ge_u32 s2, 128"); k("s_cbranch_scc1 K1_KGEN")
    gen_ln(k)
    gen_kgen(k)
    k.label("K1_END")
    return kernel_text(k, 176, 102)
K1_LAUNCH = "; @launch kernel=k1_prep_kernel grid=(640,1,1) block=(256,1,1) lds=16384"
```

```python
from gen_common import *
import gen_gemm
def gen_k2():
    k = Kern("k2_mid_kernel")
    k("s_cmp_ge_u32 s2, 512"); k("s_cbranch_scc1 K2_END")
    k("s_cmp_ge_u32 s2, 256"); k("s_cbranch_scc1 K2_CONV")
    gen_gemm.gen_gemm1(k, "K2_END")
    k("s_branch K2_END")
    k.label("K2_CONV")
    try:
        import gen_conv
        gen_conv.gen_conv(k)
    except ImportError:
        pass
    k.label("K2_END")
    return kernel_text(k, 128, 102)
K2_LAUNCH = "; @launch kernel=k2_mid_kernel grid=(512,1,1) block=(256,1,1) lds=81920"
```

```python
import sys, os
sys.path.insert(0, os.path.dirname(os.path.abspath(__file__)))
from gen_common import *
import gen_k1, gen_k2, gen_gemm
OUT = "parallel_sum__ssm_conv_s4d__mixer_token_mlp__prompt.s"
parts = [(gen_k1.K1_LAUNCH, gen_k1.gen_k1()), (gen_k2.K2_LAUNCH, gen_k2.gen_k2()), (gen_gemm.K3_LAUNCH, gen_gemm.gen_k3())]
txt = HEADER_TMPL.format(launches="\n".join(p[0] for p in parts)) + "".join(p[1] for p in parts)
open(sys.argv[1] if len(sys.argv) > 1 else OUT, "w").write(txt)
print("wrote", len(txt), "bytes")
```

```python
from gen_common import *

L2E = 0x3fb8aa3b; L2E_LO = 0x32a57060; LN2 = 0x3f317218; INV2PI = 0x3e22f983

def allreduce4(k, vs, ts):
    for r in (8, 4, 2, 1):
        for v in vs: k(f"v_add_f32_dpp v{v}, v{v}, v{v} row_ror:{r} row_mask:0xf bank_mask:0xf")
    for sw in ("v_permlane16_swap_b32", "v_permlane32_swap_b32"):
        for v, t in zip(vs, ts): k(f"v_mov_b32 v{t}, v{v}")
        for v, t in zip(vs, ts): k(f"{sw} v{v}, v{t}")
        for v, t in zip(vs, ts): k(f"v_add_f32 v{v}, v{v}, v{t}")

def ln_pass(k, X, PK, S, T, T2, T3):
    R = range(len(X))
    for r in R: k(f"v_add_f32 v{S[r]}, v{X[r][0]}, v{X[r][1]}")
    for e in range(2, 8):
        for r in R: k(f"v_add_f32 v{S[r]}, v{S[r]}, v{X[r][e]}")
    allreduce4(k, S, T)
    for r in R: k(f"v_mul_f32 v{S[r]}, 0x3b000000, v{S[r]}")
    for r in R: k(f"v_sub_f32 v{T[r]}, v{X[r][0]}, v{S[r]}")
    for r in R: k(f"v_mul_f32 v{T2[r]}, v{T[r]}, v{T[r]}")
    for e in range(1, 8):
        for r in R: k(f"v_sub_f32 v{T[r]}, v{X[r][e]}, v{S[r]}")
        for r in R: k(f"v_fmac_f32 v{T2[r]}, v{T[r]}, v{T[r]}")
    allreduce4(k, T2, T)
    for r in R: k(f"v_mul_f32 v{T2[r]}, 0x3b000000, v{T2[r]}")
    for r in R: k(f"v_cvt_pk_bf16_f32 v{T[r]}, v{S[r]}, v{T2[r]}")
    for r in R: k(f"v_lshlrev_b32 v{S[r]}, 16, v{T[r]}")
    for r in R: k(f"v_and_b32 v{T2[r]}, 0xffff0000, v{T[r]}")
    for r in R: k(f"v_add_f32 v{T2[r]}, 0x3727c5ac, v{T2[r]}")
    for r in R: k(f"v_cvt_pk_bf16_f32 v{T2[r]}, v{T2[r]}, v{T2[r]}")
    for r in R: k(f"v_lshlrev_b32 v{T2[r]}, 16, v{T2[r]}")
    for r in R: k(f"v_sqrt_f32 v{T[r]}, v{T2[r]}")
    for r in R: k(f"v_rsq_f32 v{T3[r]}, v{T2[r]}")
    for r in R: k(f"v_fma_f32 v{T2[r]}, -v{T[r]}, v{T[r]}, v{T2[r]}")
    for r in R: k(f"v_mul_f32 v{T3[r]}, 0.5, v{T3[r]}")
    for r in R: k(f"v_fmac_f32 v{T[r]}, v{T2[r]}, v{T3[r]}")
    for r in R: k(f"v_cvt_pk_bf16_f32 v{T[r]}, v{T[r]}, v{T[r]}")
    for r in R: k(f"v_lshlrev_b32 v{T[r]}, 16, v{T[r]}")
    for r in R: k(f"v_rcp_f32 v{T2[r]}, v{T[r]}")
    for e in range(0, 8, 2):
        for r in R: k(f"v_sub_f32 v{X[r][e]}, v{X[r][e]}, v{S[r]}")
        for r in R: k(f"v_sub_f32 v{X[r][e+1]}, v{X[r][e+1]}, v{S[r]}")
        for r in R: k(f"v_cvt_pk_bf16_f32 v{T3[r]}, v{X[r][e]}, v{X[r][e+1]}")
        for r in R: k(f"v_lshlrev_b32 v{X[r][e]}, 16, v{T3[r]}")
        for r in R: k(f"v_and_b32 v{X[r][e+1]}, 0xffff0000, v{T3[r]}")
        for r in R: k(f"v_mul_f32 v{T3[r]}, v{X[r][e]}, v{T2[r]}")
        for r in R: k(f"v_fma_f32 v{X[r][e]}, -v{T3[r]}, v{T[r]}, v{X[r][e]}")
        for r in R: k(f"v_fmac_f32 v{T3[r]}, v{X[r][e]}, v{T2[r]}")
        for r in R: k(f"v_mul_f32 v{X[r][e]}, v{X[r][e+1]}, v{T2[r]}")
        for r in R: k(f"v_fma_f32 v{X[r][e+1]}, -v{X[r][e]}, v{T[r]}, v{X[r][e+1]}")
        for r in R: k(f"v_fmac_f32 v{X[r][e]}, v{X[r][e+1]}, v{T2[r]}")
        for r in R: k(f"v_cvt_pk_bf16_f32 v{PK[r][e//2]}, v{T3[r]}, v{X[r][e]}")
        for r in R: k(f"v_lshlrev_b32 v{X[r][e]}, 16, v{PK[r][e//2]}")
        for r in R: k(f"v_and_b32 v{X[r][e+1]}, 0xffff0000, v{PK[r][e//2]}")

NR = 2
NLN = 2048 // (4 * NR)
def gen_ln(k):
    load_ptr(k, 4, "x"); load_ptr(k, 6, "ws")
    k("v_lshlrev_b32 v1, 4, v0")
    k(f"s_mul_i32 s16, s2, {4096*NR}")
    for r in range(1, NR): k(f"s_add_u32 s{16+r}, s16, {4096*r:#x}")
    k("s_waitcnt lgkmcnt(0)")
    mk_srd(k, 8, 4, NBYTES["x"]); mk_srd(k, 12, 6, 0xC00000)
    for r in range(NR): k(f"buffer_load_dwordx4 v[{4+4*r}:{7+4*r}], v1, s[8:11], s{16+r} offen")
    X = [[20 + 8*r + e for e in range(8)] for r in range(NR)]
    PK = [[4 + 4*r + i for i in range(4)] for r in range(NR)]
    S = [52,53,54,55][:NR]; T = [56,57,58,59][:NR]; T2 = [60,61,62,63][:NR]; T3 = [64,65,66,67][:NR]
    for r in range(NR):
        k(f"s_waitcnt vmcnt({NR-1-r})")
        for i in range(4):
            k(f"v_lshlrev_b32 v{X[r][2*i]}, 16, v{PK[r][i]}")
            k(f"v_and_b32 v{X[r][2*i+1]}, 0xffff0000, v{PK[r][i]}")
    ln_pass(k, X, PK, S, T, T2, T3)
    for r in range(NR): k(f"buffer_store_dwordx4 v[{PK[r][0]}:{PK[r][3]}], v1, s[12:15], s{16+r} offen")
    F = [[68 + 4*r + i for i in range(4)] for r in range(NR)]
    for r in range(NR):
        for i in range(4): k(f"v_cvt_pkrtz_f16_f32 v{F[r][i]}, v{X[r][2*i]}, v{X[r][2*i+1]}")
    for r in range(NR): k(f"ds_write_b128 v1, v[{F[r][0]}:{F[r][3]}] offset:{4096*r}")
    PK2 = [[84 + 4*r + i for i in range(4)] for r in range(NR)]
    ln_pass(k, X, PK2, S, T, T2, T3)
    k(f"v_add_u32 v2, {WS_H:#x}, v1")
    for r in range(NR): k(f"buffer_store_dwordx4 v[{PK2[r][0]}:{PK2[r][3]}], v2, s[12:15], s{16+r} offen")
    k("s_waitcnt lgkmcnt(0)"); k("s_barrier")
    k("v_lshlrev_b32 v2, 2, v0")
    NROW = 4 * NR
    for row in range(NROW): k(f"ds_read_b32 v{20+row}, v2 offset:{1024*row}")
    k("s_mov_b32 s20, 0x05040100"); k("s_mov_b32 s21, 0x07060302")
    k(f"v_mul_u32_u24 v3, {2*UT_PITCH}, v0")
    k(f"s_mul_i32 s22, s2, {2*NROW}"); k(f"s_add_u32 s22, s22, {WS_UT + 64:#x}")
    k("s_waitcnt lgkmcnt(0)")
    for j in range(NROW // 2):
        k(f"v_perm_b32 v{36+j}, v{21+2*j}, v{20+2*j}, s20")
        k(f"v_perm_b32 v{44+j}, v{21+2*j}, v{20+2*j}, s21")
    k(f"s_add_u32 s23, s22, {UT_PITCH}")
    for h in range(NROW // 8):
        k(f"buffer_store_dwordx4 v[{36+4*h}:{39+4*h}], v3, s[12:15], s22 offen offset:{16*h}")
        k(f"buffer_store_dwordx4 v[{44+4*h}:{47+4*h}], v3, s[12:15], s23 offen offset:{16*h}")
    k("s_cmp_lg_u32 s2, 0"); k("s_cbranch_scc1 K1_END")
    for i in range(4): k(f"v_mov_b32 v{52+i}, 0")
    for c in range(2):
        k(f"s_mov_b32 s23, {WS_UT + c*UT_PITCH:#x}")
        for i in range(4): k(f"buffer_store_dwordx4 v[52:55], v3, s[12:15], s23 offen offset:{16*i}")
    k("s_branch K1_END")

def exp_bf16(k, dst, src, t1, t2):
    k(f"v_mul_f32 v{t1}, s24, v{src}")
    k(f"v_fma_f32 v{t2}, v{src}, s24, -v{t1}")
    k(f"v_fmac_f32 v{t2}, s25, v{src}")
    k(f"v_exp_f32 v{dst}, v{t1}")
    k(f"v_mul_f32 v{t2}, v{t2}, v{dst}")
    k(f"v_fmac_f32 v{dst}, s26, v{t2}")
    k(f"v_cvt_pk_bf16_f32 v{dst}, v{dst}, v{dst}")
    k(f"v_lshlrev_b32 v{dst}, 16, v{dst}")

def gen_kgen(k, tag):
    for i, n in enumerate(("loga","aim","cre","cim","logdt","ws")): load_ptr(k, 60 + 2*i, n)
    k("v_bfe_u32 v1, v0, 4, 4"); k("v_lshlrev_b32 v1, 4, v1")
    k("s_lshl_b32 s16, s3, 8")
    k("s_lshl_b32 s17, s3, 1")
    k(f"s_mov_b32 s24, {L2E:#x}"); k(f"s_mov_b32 s25, {L2E_LO:#x}"); k(f"s_mov_b32 s26, {LN2:#x}")
    k(f"s_mov_b32 s27, {INV2PI:#x}"); k(f"s_mov_b32 s28, {L2E ^ 0x80000000:#x}")
    k("v_mov_b32 v2, 0")
    k("s_waitcnt lgkmcnt(0)")
    for i, n in enumerate(("loga","aim","cre","cim")): mk_srd(k, 32 + 4*i, 60 + 2*i, NBYTES[n])
    mk_srd(k, 48, 68, NBYTES["logdt"]); mk_srd(k, 52, 70, 0xC00000)
    k("buffer_load_ushort v3, v2, s[48:51], s17 offen")
    load_ptr(k, 72, "w1"); load_ptr(k, 74, "w2")
    k("v_lshlrev_b32 v58, 6, v0"); k("s_mul_i32 s18, s3, 14336"); k("s_waitcnt lgkmcnt(0)")
    mk_srd(k, 76, 72, NBYTES["w1"]); mk_srd(k, 80, 74, NBYTES["w2"])
    k("buffer_load_dword v59, v58, s[76:79], s18 offen"); k("buffer_load_dword v60, v58, s[80:83], s18 offen")
    for i in range(4): k(f"buffer_load_dwordx4 v[{4+4*i}:{7+4*i}], v1, s[{32+4*i}:{35+4*i}], s16 offen")
    k("v_and_b32 v20, 15, v0")
    k("v_lshlrev_b32 v21, 3, v20"); k("v_cvt_f32_u32 v21, v21")
    k("v_and_b32 v22, 8, v20"); k("v_lshlrev_b32 v22, 4, v22"); k("v_and_b32 v23, 7, v20"); k("v_or_b32 v22, v22, v23")
    k("v_cvt_f32_u32 v22, v22")
    k("v_and_b32 v23, 4, v20"); k("v_lshlrev_b32 v23, 5, v23"); k("v_and_b32 v24, 3, v20"); k("v_lshl_or_b32 v23, v24, 1, v23")
    k("v_add_u32 v23, 0x100, v23")
    k("v_and_b32 v24, 6, v20"); k("v_lshlrev_b32 v24, 6, v24"); k("v_and_b32 v25, 1, v20"); k("v_lshl_or_b32 v24, v25, 2, v24")
    k("v_add_u32 v24, 0x200, v24")
    k("v_cmp_gt_u32 vcc, 8, v20"); k("v_cndmask_b32 v23, v24, v23, vcc"); k("v_cvt_f32_u32 v23, v23")
    k("v_lshlrev_b32 v24, 7, v20"); k("v_add_u32 v24, 0x400, v24"); k("v_cvt_f32_u32 v24, v24")
    P = [21, 22, 23, 24]
    k("s_waitcnt vmcnt(6)")
    k("v_lshlrev_b32 v3, 16, v3")
    exp_bf16(k, 26, 3, 27, 28)
    k("s_waitcnt vmcnt(0)")
    k("v_mov_b32 v27, 0")
    for i in range(8):
        k(f"v_and_b32 v28, 0x7fff7fff, v{12+i}")
        k("v_lshlrev_b32 v29, 16, v28"); k("v_and_b32 v28, 0xffff0000, v28")
        k("v_add_f32 v27, v27, v29"); k("v_add_f32 v27, v27, v28")
    for sw in ("v_permlane16_swap_b32", "v_permlane32_swap_b32"):
        k("v_mov_b32 v28, v27"); k(f"{sw} v27, v28"); k("v_add_f32 v27, v27, v28")
    k("v_lshrrev_b32 v28, 6, v0"); k("v_lshlrev_b32 v28, 2, v28")
    k("ds_write_b32 v28, v27 offset:12288")
    AH = lambda s, q: 100 + 4*s + q
    AL = lambda s, q: 108 + 4*s + q
    BH = lambda t, s, q: 116 + 8*t + 4*s + q
    BL = lambda t, s, q: 140 + 8*t + 4*s + q
    for st in range(8):
        s, q = st >> 2, st & 3
        src = lambda a: (f"v_lshlrev_b32 v{{}}, 16, v{4+4*a+(st>>1)}" if st % 2 == 0 else f"v_and_b32 v{{}}, 0xffff0000, v{4+4*a+(st>>1)}")
        k(src(0).format(30)); exp_bf16(k, 31, 30, 32, 33)
        k("v_mul_f32 v31, v31, v26"); k("v_mul_f32 v31, s28, v31")
        k(src(1).format(32)); k("v_mul_f32 v32, v32, v26"); k("v_mul_f32 v32, s27, v32")
        k(src(2).format(33)); k("v_mul_f32 v33, v33, v26")
        k(src(3).format(34)); k("v_mul_f32 v34, v34, v26")
        for pi in range(4):
            k(f"v_mul_f32 v{36+pi}, v31, v{P[pi]}")
            k(f"v_mul_f32 v{40+pi}, v32, v{P[pi]}")
        for pi in range(4): k(f"v_fract_f32 v{40+pi}, v{40+pi}")
        for pi in range(4): k(f"v_exp_f32 v{36+pi}, v{36+pi}")
        for pi in range(4): k(f"v_sin_f32 v{44+pi}, v{40+pi}")
        for pi in range(4): k(f"v_cos_f32 v{40+pi}, v{40+pi}")
        for pi in range(4): k(f"v_mul_f32 v{44+pi}, v{44+pi}, v{36+pi}")
        for pi in range(4): k(f"v_mul_f32 v{40+pi}, v{40+pi}, v{36+pi}")
        for t in range(3):
            k(f"v_mul_f32 v{48+t}, v33, v{41+t}"); k(f"v_mul_f32 v{52+t}, v33, v{45+t}")
        for t in range(3):
            k(f"v_fma_f32 v{48+t}, -v34, v{45+t}, v{48+t}"); k(f"v_fma_f32 v{52+t}, -v34, v{41+t}, -v{52+t}")
        pairs = [(AH(s,q), AL(s,q), 40, 44)] + [(BH(t,s,q), BL(t,s,q), 48+t, 52+t) for t in range(3)]
        for (h, l, a, b) in pairs: k(f"v_cvt_pk_bf16_f32 v{h}, v{a}, v{b}")
        for i, (h, l, a, b) in enumerate(pairs):
            k(f"v_lshlrev_b32 v56, 16, v{h}"); k(f"v_and_b32 v57, 0xffff0000, v{h}")
            k(f"v_sub_f32 v56, v{a}, v56"); k(f"v_sub_f32 v57, v{b}, v57")
            k(f"v_cvt_pk_bf16_f32 v{l}, v56, v57")
    ACC = lambda t: 164 + 4*t
    for s in range(2):
        for t in range(3):
            c = "0" if s == 0 else f"v[{ACC(t)}:{ACC(t)+3}]"
            k(f"v_mfma_f32_16x16x32_bf16 v[{ACC(t)}:{ACC(t)+3}], v[{AH(s,0)}:{AH(s,3)}], v[{BH(t,s,0)}:{BH(t,s,3)}], {c}")
            k(f"v_mfma_f32_16x16x32_bf16 v[{ACC(t)}:{ACC(t)+3}], v[{AH(s,0)}:{AH(s,3)}], v[{BL(t,s,0)}:{BL(t,s,3)}], v[{ACC(t)}:{ACC(t)+3}]")
            k(f"v_mfma_f32_16x16x32_bf16 v[{ACC(t)}:{ACC(t)+3}], v[{AL(s,0)}:{AL(s,3)}], v[{BH(t,s,0)}:{BH(t,s,3)}], v[{ACC(t)}:{ACC(t)+3}]")
    k("v_lshrrev_b32 v28, 6, v0"); k("v_mul_u32_u24 v28, 3072, v28"); k("v_and_b32 v29, 63, v0"); k("v_lshl_add_u32 v28, v29, 4, v28")
    for t in range(3): k(f"ds_write_b128 v28, v[{ACC(t)}:{ACC(t)+3}] offset:{1024*t}")
    k("s_waitcnt lgkmcnt(0)"); k("s_barrier")
    k("v_readfirstlane_b32 s20, v0"); k("s_lshr_b32 s20, s20, 6")
    k("s_cmp_ge_u32 s20, 3"); k(f"s_cbranch_scc1 KG_DONE{tag}")
    k("s_lshl_b32 s21, s20, 10")
    k("v_lshl_add_u32 v28, v29, 4, s21")
    for w in range(4): k(f"ds_read_b128 v[{4+4*w}:{7+4*w}], v28 offset:{3072*w}")
    k("v_mov_b32 v29, 0"); k("ds_read_b128 v[20:23], v29 offset:12288")
    k("s_waitcnt lgkmcnt(0)")
    for i in range(4):
        k(f"v_add_f32 v{4+i}, v{4+i}, v{8+i}"); k(f"v_add_f32 v{12+i}, v{12+i}, v{16+i}"); k(f"v_add_f32 v{4+i}, v{4+i}, v{12+i}")
    k("v_add_f32 v20, v20, v21"); k("v_add_f32 v22, v22, v23"); k("v_add_f32 v20, v20, v22")
    k("v_mul_f32 v20, v20, v26"); k("v_add_f32 v20, v20, v20")
    k("v_lshrrev_b32 v20, 23, v20"); k("v_max_u32 v20, 14, v20"); k("v_min_u32 v20, 0xfe, v20")
    k("v_sub_u32 v21, 0x10b, v20"); k("v_lshlrev_b32 v21, 23, v21")
    k("v_subrev_u32 v22, 13, v20"); k("v_lshlrev_b32 v22, 23, v22")
    k("v_add_f32 v21, v21, v21")
    for i in range(4): k(f"v_mul_f32 v{4+i}, v{4+i}, v21")
    k("v_cvt_pk_f16_f32 v4, v4, v5"); k("v_cvt_pk_f16_f32 v5, v6, v7")
    k("v_and_b32 v28, 15, v0"); k("v_bfe_u32 v29, v0, 4, 2"); k("v_lshlrev_b32 v28, 5, v28"); k("v_lshl_or_b32 v28, v29, 3, v28")
    k("s_lshl_b32 s21, s20, 9"); k("s_lshl_b32 s22, s3, 11"); k("s_add_u32 s21, s21, s22"); k(f"s_add_u32 s21, s21, {WS_KD:#x}")
    k("buffer_store_dwordx2 v[4:5], v28, s[52:55], s21 offen")
    k("s_cmp_lg_u32 s20, 0"); k(f"s_cbranch_scc1 KG_DONE{tag}")
    k("v_mov_b32 v28, 0"); k(f"s_add_u32 s22, s22, {WS_KD + 1536:#x}")
    k("buffer_store_dword v22, v28, s[52:55], s22 offen")
    k.label(f"KG_DONE{tag}")
    k("s_waitcnt vmcnt(0) lgkmcnt(0)"); k("s_barrier")

def gen_k1():
    k = Kern("k1_prep_kernel")
    k(f"s_cmp_ge_u32 s2, {NLN+512}"); k("s_cbranch_scc1 K1_END")
    k(f"s_cmp_ge_u32 s2, {NLN}"); k("s_cbranch_scc1 K1_KGEN")
    gen_ln(k)
    k.label("K1_KGEN"); k(f"s_sub_u32 s3, s2, {NLN}")
    gen_kgen(k, "_k1")
    k.label("K1_END")
    return kernel_text(k, 176, 102)
K1_LAUNCH = f"; @launch kernel=k1_prep_kernel grid=({NLN+512},1,1) block=(256,1,1) lds=16384"
```
